```python
import torch

def _softmax(x, axis=-1):
    return torch.softmax(x, dim=axis)
def _gelu(x):
    return torch.nn.functional.gelu(x, approximate="tanh")
def _silu(x):
    return torch.nn.functional.silu(x)
def _sigmoid(x):
    return torch.sigmoid(x)
def _layernorm(x, axis=-1, eps=1e-5):
    m = x.mean(dim=axis, keepdim=True)
    v = x.var(dim=axis, keepdim=True, unbiased=False)
    return (x - m) / torch.sqrt(v + eps)
def _scatter_add(tgt, idx, src, axis=0):
    return tgt.clone().index_add_(axis, idx, src)
def _segment_sum(src, seg, n):
    out = torch.zeros((n,) + src.shape[1:], dtype=src.dtype)
    return out.index_add_(0, seg, src)
def _pad(x, pw):
    flat = tuple(v for pair in reversed(pw) for v in pair)
    return torch.nn.functional.pad(x, flat)

kernel_name = 'standalone__adm_resblock__diffusion'

def setup_inputs():

    _w = (lambda a: (lambda t: t.to(torch.bfloat16) if t.is_floating_point() else t)(torch.as_tensor(a)))
    B, C, HW, E = 2, 128, 64, 384
    sc = (9.0 * C) ** -0.5
    return {
        "x": _w((lambda *s: torch.randn(*s, dtype=torch.bfloat16) * 0.05)(B, C, HW, HW)),
        "t_emb": _w((lambda *s: torch.randn(*s, dtype=torch.bfloat16) * 0.4)(B, E)),
        "g1": _w(1.0 + 0.1 * (lambda *s: torch.randn(*s, dtype=torch.bfloat16) * 0.4)(C)),
        "be1": _w(0.1 * (lambda *s: torch.randn(*s, dtype=torch.bfloat16) * 0.4)(C)),
        "w1": _w((lambda *s: torch.randn(*s, dtype=torch.bfloat16) * 0.4)(C, C, 3, 3) * sc),
        "w_emb": _w((lambda *s: torch.randn(*s, dtype=torch.bfloat16) * 0.4)(E, C) * (E ** -0.5)),
        "g2": _w(1.0 + 0.1 * (lambda *s: torch.randn(*s, dtype=torch.bfloat16) * 0.4)(C)),
        "be2": _w(0.1 * (lambda *s: torch.randn(*s, dtype=torch.bfloat16) * 0.4)(C)),
        "w2": _w((lambda *s: torch.randn(*s, dtype=torch.bfloat16) * 0.4)(C, C, 3, 3) * sc),
    }

def reference(x, t_emb, g1, be1, w1, w_emb, g2, be2, w2):
    B, C, H, W = x.shape
    G, eps = 4, 1e-5
    def gn(z, gamma, beta):
        zr = z.reshape(B, G, (C // G) * H * W)
        mu = zr.mean(-1).reshape(B, G, 1)
        var = ((zr - mu) ** 2).mean(-1).reshape(B, G, 1)
        zn = ((zr - mu) / torch.sqrt(var + eps)).reshape(B, C, H, W)
        return zn * gamma.reshape(1, C, 1, 1) + beta.reshape(1, C, 1, 1)
    def conv3(z, w):
        zp = _pad(z, ((0, 0), (0, 0), (1, 1), (1, 1)))
        taps = [torch.einsum("bchw,oc->bohw", zp[:, :, i:i+H, j:j+W], w[:, :, i, j]) for i in range(3) for j in range(3)]
        out = taps[0]
        for t in taps[1:]:
            out = out + t
        return out
    h = conv3(_silu(gn(x, g1, be1)), w1)
    emb = _silu(t_emb) @ w_emb
    h = h + emb.reshape(B, C, 1, 1)
    h = conv3(_silu(gn(h, g2, be2)), w2)
    return x + h
```

```python
import sys
STAMPS = "--stamps" in sys.argv
OUT = [a for a in sys.argv[1:] if not a.startswith("--")][0]
OPT = {a.split("=")[0][2:]: int(a.split("=")[1]) for a in sys.argv[1:] if a.startswith("--") and "=" in a}
L = []
def e(s):
    for ln in s.strip("\n").split("\n"):
        L.append("    " + ln.strip())
def lab(s): L.append(s + ":")

ACT = 0; RED = 30720; QP = 17408
TB = RED; RAW = RED + 9216
MISC = RED + 4 * QP
ST = MISC; PART = MISC + 64; EMBP = MISC + 256; EMB = EMBP + 2048
LDS = EMB + 256
SLOT1 = 4096; SLOT2 = 16384; XT = 1 << 20; HB = 4 << 20; WF = 8 << 20; WFC = 294912
SLEEP = OPT.get("sleep", 8)
nst = [0]
def stamp():
    if STAMPS:
        k = nst[0]; nst[0] += 1
        e("s_memrealtime s[%d:%d]" % (64 + 2 * k, 65 + 2 * k))

def red16(a, b):
    for r in (8, 4, 2, 1):
        e("v_add_f32_dpp %s, %s, %s row_ror:%d row_mask:0xf bank_mask:0xf" % (a, a, a, r))
        e("v_add_f32_dpp %s, %s, %s row_ror:%d row_mask:0xf bank_mask:0xf" % (b, b, b, r))
        e("s_nop 0")
def redrows(a, b, ta, tb):
    for op in ("v_permlane16_swap_b32", "v_permlane32_swap_b32"):
        e("v_mov_b32 %s, %s\nv_mov_b32 %s, %s\ns_nop 1" % (ta, a, tb, b))
        e("%s %s, %s\n%s %s, %s\ns_nop 1" % (op, a, ta, op, b, tb))
        e("v_add_f32 %s, %s, %s\nv_add_f32 %s, %s, %s\ns_nop 1" % (a, a, ta, b, b, tb))

def reduce_parts():
    pass

def publish(slot_s):
    e("s_mov_b64 exec, 3")
    e("v_mov_b32 v6, s34\nv_mov_b32 v7, 0\nv_lshlrev_b32 v16, 4, v1")
    e("global_store_dwordx4 v16, v[4:7], s[%d:%d] sc0 sc1" % (slot_s, slot_s + 1))
    e("s_mov_b64 exec, -1")

def poll(slot_s, name):
    e("v_lshlrev_b32 v16, 4, v1\ns_mov_b32 s40, 0x20000")
    lab(name + "_loop")
    for k in range(4):
        e("global_load_dwordx4 v[%d:%d], v16, s[%d:%d] offset:%d sc1" % (32 + 4 * k, 35 + 4 * k, slot_s, slot_s + 1, k * 1024))
    e("s_waitcnt vmcnt(0)")
    e("v_cmp_eq_u32 vcc, s34, v34\nv_cmp_eq_u32 s[42:43], s34, v38\nv_cmp_eq_u32 s[52:53], s34, v42\nv_cmp_eq_u32 s[54:55], s34, v46")
    e("s_nop 1\ns_and_b64 vcc, vcc, s[42:43]\ns_and_b64 s[52:53], s[52:53], s[54:55]\ns_and_b64 vcc, vcc, s[52:53]")
    e("s_cmp_eq_u64 vcc, -1")
    e("s_cbranch_scc1 %s_done" % name)
    e("s_sleep %d\ns_sub_u32 s40, s40, 1\ns_cmp_lg_u32 s40, 0\ns_cbranch_scc1 %s_loop" % (SLEEP, name))
    lab(name + "_done")

def final_stats():
    e("v_add_f32 v32, v32, v36\nv_add_f32 v33, v33, v37\nv_add_f32 v40, v40, v44\nv_add_f32 v41, v41, v45")
    e("v_add_f32 v32, v32, v40\nv_add_f32 v33, v33, v41\ns_nop 1")
    for r in (8, 4):
        e("v_add_f32_dpp v32, v32, v32 row_ror:%d row_mask:0xf bank_mask:0xf" % r)
        e("v_add_f32_dpp v33, v33, v33 row_ror:%d row_mask:0xf bank_mask:0xf\ns_nop 0" % r)
    redrows("v32", "v33", "v34", "v35")
    e("v_mul_f32 v32, 0x37000000, v32\nv_mul_f32 v33, 0x37000000, v33")
    e("v_fma_f32 v33, -v32, v32, v33\nv_max_f32 v33, 0, v33\nv_add_f32 v33, 0x3727c5ac, v33")
    e("v_rsq_f32 v33, v33\nv_lshlrev_b32 v34, 3, v1\nv_add_u32 v34, %d, v34" % ST)
    e("s_mov_b64 exec, 15\nds_write_b64 v34, v[32:33]\ns_mov_b64 exec, -1")

def tile_loads(base_s):
    e("s_cmp_lt_u32 s33, 3\ns_cbranch_scc0 %s" % ("skip3_%d" % base_s))
    e("global_load_dwordx4 v[60:63], v11, s[%d:%d] sc1" % (base_s, base_s + 1))
    lab("skip3_%d" % base_s)
    for r in range(3):
        e("global_load_dwordx4 v[%d:%d], v%d, s[%d:%d] sc1" % (48 + 4 * r, 51 + 4 * r, 8 + r, base_s, base_s + 1))

def coefs(g0, b0):
    e("v_bfe_u32 v16, v0, 2, 2\nv_lshlrev_b32 v16, 3, v16\nv_add_u32 v16, %d, v16\nds_read_b64 v[16:17], v16" % ST)
    for d in range(4):
        e("v_lshlrev_b32 v%d, 16, v%d\nv_and_b32 v%d, 0xffff0000, v%d" % (32 + 2 * d, g0 + d, 33 + 2 * d, g0 + d))
        e("v_lshlrev_b32 v%d, 16, v%d\nv_and_b32 v%d, 0xffff0000, v%d" % (40 + 2 * d, b0 + d, 41 + 2 * d, b0 + d))
    e("s_waitcnt lgkmcnt(0)")
    for d in range(4):
        e("v_pk_mul_f32 v[%d:%d], v[%d:%d], v[16:17] op_sel:[0,1] op_sel_hi:[1,1]" % (32 + 2 * d, 33 + 2 * d, 32 + 2 * d, 33 + 2 * d))
    for d in range(4):
        e("v_pk_fma_f32 v[%d:%d], v[%d:%d], v[16:17], v[%d:%d] op_sel:[0,0,0] op_sel_hi:[1,0,1] neg_lo:[1,0,0] neg_hi:[1,0,0]" % (40 + 2 * d, 41 + 2 * d, 32 + 2 * d, 33 + 2 * d, 40 + 2 * d, 41 + 2 * d))

def norm_round(r):
    src = 48 + 4 * r
    for d in range(4):
        e("v_lshlrev_b32 v%d, 16, v%d\nv_and_b32 v%d, 0xffff0000, v%d" % (16 + 2 * d, src + d, 17 + 2 * d, src + d))
    for d in range(4):
        e("v_pk_fma_f32 v[%d:%d], v[%d:%d], v[%d:%d], v[%d:%d]" % (16 + 2 * d, 17 + 2 * d, 16 + 2 * d, 17 + 2 * d, 32 + 2 * d, 33 + 2 * d, 40 + 2 * d, 41 + 2 * d))
    for d in range(4):
        e("v_pk_mul_f32 v[%d:%d], v[%d:%d], s[56:57]" % (24 + 2 * d, 25 + 2 * d, 16 + 2 * d, 17 + 2 * d))
    for d in range(8):
        e("v_exp_f32 v%d, v%d" % (24 + d, 24 + d))
    for d in range(4):
        e("v_pk_add_f32 v[%d:%d], v[%d:%d], s[58:59]" % (24 + 2 * d, 25 + 2 * d, 24 + 2 * d, 25 + 2 * d))
    for d in range(8):
        e("v_rcp_f32 v%d, v%d" % (24 + d, 24 + d))
    for d in range(4):
        e("v_pk_mul_f32 v[%d:%d], v[%d:%d], v[%d:%d]" % (16 + 2 * d, 17 + 2 * d, 16 + 2 * d, 17 + 2 * d, 24 + 2 * d, 25 + 2 * d))
    for d in range(4):
        e("v_cvt_pk_bf16_f32 v%d, v%d, v%d" % (24 + d, 16 + 2 * d, 17 + 2 * d))
    for d in range(4):
        e("v_cndmask_b32 v%d, 0, v%d, s[%d:%d]" % (24 + d, 24 + d, 44 + 2 * r, 45 + 2 * r))
    e("ds_write_b128 v%d, v[24:27]" % (12 + r))

def norm_phase(nW, tag):
    e("s_waitcnt vmcnt(%d)" % min(63, nW + 2))
    norm_round(0)
    e("s_cmp_lt_u32 s33, 3\ns_cbranch_scc0 nskip3_%s" % tag)
    norm_round(3)
    lab("nskip3_%s" % tag)
    e("s_waitcnt vmcnt(%d)" % (nW + 1))
    norm_round(1)
    e("s_waitcnt vmcnt(%d)" % nW)
    norm_round(2)

def mfma_phase(conv):
    W = 112 if conv == 0 else 184
    e("v_bfe_u32 v16, v1, 4, 1\nv_mul_u32_u24 v16, 5120, v16\nv_and_b32 v17, 15, v1\nv_mad_u32_u24 v16, v17, s60, v16")
    e("v_lshrrev_b32 v17, 5, v1\nv_lshl_add_u32 v16, v17, 4, v16\ns_lshr_b32 s42, s33, 1\ns_lshl_b32 s42, s42, 6\nv_add_u32 v16, s42, v16")
    def rd(k):
        s, mt = k >> 1, k & 1
        j, t = divmod(s, 9); dy, dx = divmod(t, 3)
        off = ACT + mt * 2 * 5120 + dy * 5120 + dx * 272 + j * 32
        b = 32 + 4 * (k % 8)
        e("ds_read_b128 v[%d:%d], v16 offset:%d" % (b, b + 3, off))
    NP = 7
    for k in range(NP): rd(k)
    for k in range(36):
        s, mt = k >> 1, k & 1
        if conv == 0 and mt == 0:
            e("s_waitcnt vmcnt(%d) lgkmcnt(%d)" % (18 + 17 - s, min(NP - 1, 35 - k)))
        else:
            e("s_waitcnt lgkmcnt(%d)" % min(NP - 1, 35 - k))
        b = 32 + 4 * (k % 8); acc = 80 + 16 * mt; w = W + 4 * s
        c = "0" if s == 0 else "v[%d:%d]" % (acc, acc + 15)
        if conv == 0:
            e("v_mfma_f32_32x32x16_bf16 v[%d:%d], v[%d:%d], v[%d:%d], %s" % (acc, acc + 15, w, w + 3, b, b + 3, c))
        else:
            e("v_mfma_f32_32x32x16_bf16 v[%d:%d], v[%d:%d], v[%d:%d], %s" % (acc, acc + 15, b, b + 3, w, w + 3, c))
        if k + NP < 36: rd(k + NP)
    e("v_and_b32 v17, 31, v1\nv_mul_u32_u24 v16, 272, v17\nv_lshrrev_b32 v17, 5, v1\nv_lshl_add_u32 v16, v17, 4, v16")
    e("s_lshr_b32 s42, s33, 1\ns_mul_i32 s42, s42, %d\ns_and_b32 s43, s33, 1" % QP)
    if conv == 0:
        e("s_lshl_b32 s43, s43, 7"); mo = 8704
    else:
        e("s_mul_i32 s43, s43, 8704"); mo = 128
    e("s_add_u32 s42, s42, s43\ns_add_u32 s42, s42, %d\nv_add_u32 v16, s42, v16" % RED)
    e("s_nop 7")
    for mt in range(2):
        for i in range(4):
            a = 80 + 16 * mt + 4 * i
            e("ds_write_b128 v16, v[%d:%d] offset:%d" % (a, a + 3, mt * mo + i * 32))

def red_read():
    e("v_lshrrev_b32 v2, 3, v0\nv_mul_u32_u24 v2, 272, v2\nv_and_b32 v3, 7, v0\nv_lshl_add_u32 v2, v3, 5, v2\nv_add_u32 v2, %d, v2" % RED)
    for q in range(4):
        for h in range(2):
            b = 32 + 8 * q + 4 * h
            e("ds_read_b128 v[%d:%d], v2 offset:%d" % (b, b + 3, q * QP + h * 16))

def red_sum(extra):
    e("s_waitcnt lgkmcnt(4)")
    for d in range(4):
        e("v_pk_add_f32 v[%d:%d], v[%d:%d], v[%d:%d]" % (32 + 2 * d, 33 + 2 * d, 32 + 2 * d, 33 + 2 * d, 40 + 2 * d, 41 + 2 * d))
    if extra is not None:
        for d in range(4):
            e("v_pk_add_f32 v[%d:%d], v[%d:%d], v[%d:%d]" % (32 + 2 * d, 33 + 2 * d, 32 + 2 * d, 33 + 2 * d, extra + 2 * d, extra + 1 + 2 * d))
    e("s_waitcnt lgkmcnt(0)")
    for d in range(4):
        e("v_pk_add_f32 v[%d:%d], v[%d:%d], v[%d:%d]" % (48 + 2 * d, 49 + 2 * d, 48 + 2 * d, 49 + 2 * d, 56 + 2 * d, 57 + 2 * d))
    for d in range(4):
        e("v_pk_add_f32 v[%d:%d], v[%d:%d], v[%d:%d]" % (32 + 2 * d, 33 + 2 * d, 32 + 2 * d, 33 + 2 * d, 48 + 2 * d, 49 + 2 * d))

def part_reduce():
    e("v_and_b32 v16, 15, v1\nv_lshlrev_b32 v16, 3, v16\nv_add_u32 v16, %d, v16\nds_read_b64 v[4:5], v16\ns_waitcnt lgkmcnt(0)" % PART)
    e("v_add_f32_dpp v4, v4, v4 quad_perm:[2,3,0,1] row_mask:0xf bank_mask:0xf\nv_add_f32_dpp v5, v5, v5 quad_perm:[2,3,0,1] row_mask:0xf bank_mask:0xf\ns_nop 0")
    for r in (4, 8):
        e("v_add_f32_dpp v4, v4, v4 row_ror:%d row_mask:0xf bank_mask:0xf\nv_add_f32_dpp v5, v5, v5 row_ror:%d row_mask:0xf bank_mask:0xf\ns_nop 0" % (r, r))

e("s_cmp_ge_u32 s2, 256\ns_cbranch_scc1 end")
stamp()
e("s_load_dwordx16 s[4:19], s[0:1], 0\ns_load_dwordx8 s[20:27], s[0:1], 64")
e("""
v_and_b32 v1, 63, v0
v_lshrrev_b32 v2, 6, v0
s_lshr_b32 s28, s2, 7
s_and_b32 s29, s2, 127
v_readfirstlane_b32 s33, v2
s_and_b32 s30, s29, 1
s_lshr_b32 s31, s29, 5
s_lshl_b32 s31, s31, 2
s_bfe_u32 s35, s29, 0x20001
s_or_b32 s31, s31, s35
s_bfe_u32 s32, s29, 0x20003
s_mov_b32 s56, 0xbfb8aa3b
s_mov_b32 s57, 0xbfb8aa3b
s_mov_b32 s58, 1.0
s_mov_b32 s59, 1.0
s_movk_i32 s60, 272
""")
e("v_lshlrev_b32 v24, 1, v1")
for j in range(1, 8): e("v_add_u32 v%d, %d, v24" % (24 + j, j * 8192))
e("""
v_and_b32 v2, 255, v0
v_min_u32 v2, 143, v2
v_mul_u32_u24 v3, 3641, v2
v_lshrrev_b32 v3, 16, v3
v_mul_u32_u24 v4, 18, v3
v_sub_u32 v4, v2, v4
v_mul_u32_u24 v3, 2304, v3
v_lshl_add_u32 v3, v4, 4, v3
s_lshr_b32 s36, s29, 3
s_and_b32 s37, s29, 7
s_mul_i32 s38, s36, 18432
s_mul_i32 s39, s37, 288
s_add_u32 s38, s38, s39
v_add_u32 v3, s38, v3
""")
e("""
v_lshrrev_b32 v5, 3, v0
v_lshlrev_b32 v5, 13, v5
v_bfe_u32 v6, v0, 1, 2
v_lshl_add_u32 v5, v6, 7, v5
v_and_b32 v6, 1, v0
v_lshl_add_u32 v5, v6, 4, v5
s_lshl_b32 s38, s28, 20
s_lshl_b32 s39, s30, 19
s_add_u32 s38, s38, s39
s_lshl_b32 s39, s31, 9
s_add_u32 s38, s38, s39
s_lshl_b32 s39, s32, 5
s_add_u32 s38, s38, s39
v_add_u32 v67, s38, v5
v_and_b32 v6, 15, v0
v_lshlrev_b32 v6, 4, v6
""")
e("""
v_lshrrev_b32 v7, 3, v0
v_lshlrev_b32 v22, 1, v7
v_lshlrev_b32 v7, 8, v7
v_and_b32 v21, 7, v0
v_lshl_add_u32 v7, v21, 4, v7
s_lshl_b32 s39, s30, 7
v_add_u32 v7, s39, v7
s_mul_i32 s39, s28, 768
v_add_u32 v22, s39, v22
""")
e("s_waitcnt lgkmcnt(0)")
e("""
s_lshl_b32 s38, s28, 20
s_lshl_b32 s39, s30, 19
s_add_u32 s38, s38, s39
s_lshl_b32 s39, s33, 16
s_add_u32 s38, s38, s39
s_lshr_b32 s39, s29, 1
s_lshl_b32 s39, s39, 7
s_add_u32 s38, s38, s39
s_add_u32 s36, s4, s38
s_addc_u32 s37, s5, 0
""")
for j in range(8): e("global_load_ushort v%d, v%d, s[36:37]" % (16 + j if j < 4 else 8 + j - 4, 24 + j))
e("s_cmp_lt_u32 s33, 4\ns_cselect_b32 s38, s12, s20\ns_cselect_b32 s39, s13, s21")
e("global_load_dwordx4 v[48:51], v3, s[38:39]")
e("global_load_dwordx4 v[76:79], v67, s[4:5]")
e("global_load_dwordx4 v[104:107], v6, s[8:9]\nglobal_load_dwordx4 v[108:111], v6, s[10:11]")
e("global_load_dwordx4 v[68:71], v6, s[16:17]\nglobal_load_dwordx4 v[72:75], v6, s[18:19]")
for p in range(6): e("global_load_ushort v%d, v22, s[6:7] offset:%d" % (96 + p, p * 128))
for p in range(6):
    if p: e("v_add_u32 v7, 16384, v7")
    e("global_load_dwordx4 v[%d:%d], v7, s[14:15]" % (112 + 4 * p, 115 + 4 * p))
e("""
s_lshl_b32 s38, s28, 8
s_add_u32 s62, s26, s38
s_addc_u32 s63, s27, 0
s_load_dword s34, s[62:63], 0
s_lshl_b32 s38, s28, 12
s_add_u32 s90, s26, s38
s_addc_u32 s91, s27, 0
s_add_u32 s92, s90, %d
s_addc_u32 s93, s91, 0
s_add_u32 s90, s90, %d
s_addc_u32 s91, s91, 0
s_lshl_b32 s38, s29, 5
s_add_u32 s94, s90, s38
s_addc_u32 s95, s91, 0
s_add_u32 s96, s92, s38
s_addc_u32 s97, s93, 0
s_lshl_b32 s38, s28, 20
s_add_u32 s38, s38, %d
s_add_u32 s88, s26, s38
s_addc_u32 s89, s27, 0
s_add_u32 s98, s88, %d
s_addc_u32 s99, s89, 0
s_mul_i32 s38, s28, %d
s_add_u32 s38, s38, %d
s_add_u32 s100, s26, s38
s_addc_u32 s101, s27, 0
""" % (SLOT2, SLOT1, XT, HB - XT, 2 * WFC, WF))
e("s_waitcnt vmcnt(18)")
e("v_lshl_or_b32 v16, v17, 16, v16\nv_lshl_or_b32 v17, v19, 16, v18\nv_lshl_or_b32 v18, v9, 16, v8\nv_lshl_or_b32 v19, v11, 16, v10")
e("v_mul_u32_u24 v20, 144, v1\ns_lshl_b32 s38, s33, 4\ns_add_u32 s38, s38, %d\nv_add_u32 v20, s38, v20\nds_write_b128 v20, v[16:19]" % TB)
e("v_mov_b32 v21, 0x3f803f80\nv_mov_b32 v4, 0\nv_mov_b32 v5, 0")
for d in range(4):
    e("v_dot2_f32_bf16 v4, v%d, v21, v4\nv_dot2_f32_bf16 v5, v%d, v%d, v5" % (16 + d, 16 + d, 16 + d))
e("s_nop 3")
red16("v4", "v5")
redrows("v4", "v5", "v20", "v21")
e("s_lshr_b32 s39, s33, 2\nv_cmp_eq_u32 vcc, s39, v1\ns_lshl_b32 s38, s33, 4\ns_add_u32 s38, s38, %d\nv_lshlrev_b32 v20, 3, v1\nv_add_u32 v20, s38, v20" % PART)
e("v_cndmask_b32 v4, 0, v4, vcc\nv_cndmask_b32 v5, 0, v5, vcc\ns_mov_b64 exec, 3\nds_write_b64 v20, v[4:5]\ns_mov_b64 exec, -1")
e("v_lshrrev_b32 v20, 8, v0\nv_mul_u32_u24 v20, 2304, v20\nv_lshl_add_u32 v20, v2, 4, v20\ns_waitcnt vmcnt(17)\nds_write_b128 v20, v[48:51] offset:%d" % RAW)
for r in range(4):
    e("""
    v_lshrrev_b32 v24, 4, v0
    v_add_u32 v24, %d, v24
    v_mul_u32_u24 v25, 3641, v24
    v_lshrrev_b32 v25, 16, v25
    v_mul_u32_u24 v26, 18, v25
    v_sub_u32 v26, v24, v26
    v_mul_u32_u24 v27, 5120, v25
    v_mad_u32_u24 v27, v26, s60, v27
    v_add_u32 v%d, v27, v6
    s_lshl_b32 s38, s31, 2
    s_sub_u32 s38, s38, 1
    s_lshl_b32 s39, s32, 4
    s_sub_u32 s39, s39, 1
    v_add_u32 v25, s38, v25
    v_add_u32 v26, s39, v26
    v_cmp_gt_u32 vcc, 64, v25
    v_cmp_gt_u32 s[%d:%d], 64, v26
    v_med3_i32 v25, v25, 0, 63
    v_med3_i32 v26, v26, 0, 63
    s_and_b64 s[%d:%d], s[%d:%d], vcc
    v_lshl_add_u32 v25, v25, 6, v26
    v_lshl_add_u32 v%d, v25, 8, v6
    """ % (32 * r, 12 + r, 44 + 2 * r, 45 + 2 * r, 44 + 2 * r, 45 + 2 * r, 44 + 2 * r, 45 + 2 * r, 8 + r))
e("s_waitcnt lgkmcnt(0)\ns_barrier")
stamp()
e("v_lshrrev_b32 v20, 3, v0\nv_mul_u32_u24 v21, 144, v20\nv_and_b32 v22, 7, v0\nv_lshl_add_u32 v21, v22, 4, v21\nds_read_b128 v[16:19], v21 offset:%d" % TB)
e("v_lshlrev_b32 v20, 8, v20\nv_lshl_add_u32 v20, v22, 4, v20\ns_lshr_b32 s38, s29, 1\ns_lshl_b32 s38, s38, 14\ns_lshl_b32 s39, s30, 7\ns_add_u32 s38, s38, s39\nv_add_u32 v20, s38, v20")
e("""
v_lshrrev_b32 v24, 4, v2
v_bfe_u32 v25, v2, 3, 1
v_and_b32 v26, 7, v2
v_mul_u32_u24 v27, 288, v26
v_mul_u32_u24 v28, 144, v25
v_add_u32 v27, v27, v28
v_lshl_add_u32 v27, v24, 1, v27
v_lshrrev_b32 v28, 8, v0
v_mul_u32_u24 v29, 2304, v28
v_add_u32 v27, v27, v29
""")
for k in range(8): e("ds_read_u16 v%d, v27 offset:%d" % (32 + k, RAW + k * 18))
e("""
s_lshr_b32 s36, s29, 3
s_and_b32 s37, s29, 7
s_lshr_b32 s38, s36, 2
s_lshl_b32 s38, s38, 2
s_lshr_b32 s39, s37, 1
s_add_u32 s38, s38, s39
s_mul_i32 s38, s38, 18432
s_and_b32 s39, s37, 1
s_mul_i32 s39, s39, 9216
s_add_u32 s38, s38, s39
s_and_b32 s39, s36, 3
s_lshl_b32 s39, s39, 7
s_add_u32 s38, s38, s39
v_mul_u32_u24 v28, %d, v28
v_lshl_add_u32 v28, v24, 10, v28
v_lshl_add_u32 v28, v25, 9, v28
v_lshl_add_u32 v28, v26, 4, v28
v_add_u32 v28, s38, v28
""" % WFC)
e("s_waitcnt lgkmcnt(8)\nglobal_store_dwordx4 v20, v[16:19], s[88:89] sc0 sc1")
e("s_waitcnt lgkmcnt(0)")
for d in range(4): e("v_lshl_or_b32 v%d, v%d, 16, v%d" % (32 + d, 33 + 2 * d, 32 + 2 * d))
e("v_and_b32 v24, 255, v0\nv_cmp_gt_u32 vcc, 144, v24\ns_and_saveexec_b64 s[42:43], vcc\ns_cbranch_execz nowf")
e("global_store_dwordx4 v28, v[32:35], s[100:101] sc0 sc1")
lab("nowf")
e("s_mov_b64 exec, -1")
e("s_cmp_eq_u32 s33, 0\ns_cbranch_scc0 a_nw0")
part_reduce()
e("s_mul_i32 s34, s34, 0x9e3779b1\ns_add_u32 s34, s34, 0x7f4a7c15")
lab("a_nw0")
e("s_waitcnt vmcnt(0)\ns_barrier")
e("s_cmp_eq_u32 s33, 0\ns_cbranch_scc0 a_nw0b")
publish(94)
lab("a_nw0b")
stamp()
for p in range(6): e("v_lshlrev_b32 v%d, 16, v%d" % (96 + p, 96 + p))
for p in range(6): e("v_mul_f32 v%d, s56, v%d" % (16 + p, 96 + p))
for p in range(6): e("v_exp_f32 v%d, v%d" % (16 + p, 16 + p))
for p in range(6): e("v_add_f32 v%d, 1.0, v%d" % (16 + p, 16 + p))
for p in range(6): e("v_rcp_f32 v%d, v%d" % (16 + p, 16 + p))
for p in range(6): e("v_mul_f32 v%d, v%d, v%d" % (96 + 2 * p if False else 32 + 2 * p, 96 + p, 16 + p))
for p in range(6):
    for d in range(4):
        e("v_lshlrev_b32 v%d, 16, v%d\nv_and_b32 v%d, 0xffff0000, v%d" % (24 + 2 * d, 112 + 4 * p + d, 25 + 2 * d, 112 + 4 * p + d))
    for d in range(4):
        if p == 0:
            e("v_pk_mul_f32 v[%d:%d], v[%d:%d], v[32:33] op_sel_hi:[1,0]" % (16 + 2 * d, 17 + 2 * d, 24 + 2 * d, 25 + 2 * d))
        else:
            e("v_pk_fma_f32 v[%d:%d], v[%d:%d], v[%d:%d], v[%d:%d] op_sel_hi:[1,0,1]" % (16 + 2 * d, 17 + 2 * d, 24 + 2 * d, 25 + 2 * d, 32 + 2 * p, 33 + 2 * p, 16 + 2 * d, 17 + 2 * d))
e("s_nop 1")
for d in range(8): e("v_add_f32_dpp v%d, v%d, v%d row_ror:8 row_mask:0xf bank_mask:0xf" % (16 + d, 16 + d, 16 + d))
e("s_nop 1")
for d in range(4): e("v_permlane16_swap_b32 v%d, v%d" % (16 + 2 * d, 17 + 2 * d))
e("s_nop 1")
for d in range(4): e("v_add_f32 v%d, v%d, v%d" % (16 + 2 * d, 16 + 2 * d, 17 + 2 * d))
e("s_nop 1\nv_permlane32_swap_b32 v16, v18\nv_permlane32_swap_b32 v20, v22\ns_nop 1\nv_add_f32 v16, v16, v18\nv_add_f32 v20, v20, v22")
e("v_and_b32 v24, 7, v1\nv_lshlrev_b32 v24, 3, v24\nv_lshrrev_b32 v25, 4, v1\nv_and_b32 v26, 1, v25\nv_lshrrev_b32 v25, 1, v25\nv_lshl_add_u32 v26, v25, 1, v26\nv_add_u32 v24, v24, v26")
e("v_lshlrev_b32 v24, 2, v24\ns_lshl_b32 s38, s33, 8\ns_add_u32 s38, s38, %d\nv_add_u32 v24, s38, v24\nds_write_b32 v24, v16\nds_write_b32 v24, v20 offset:16" % EMBP)
e("s_cmp_eq_u32 s33, 0\ns_cbranch_scc0 p1_skip")
poll(90, "p1")
lab("p1_skip")
e("s_waitcnt lgkmcnt(0)\ns_barrier")
stamp()
tile_loads(88)
e("s_and_b32 s38, s33, 1\ns_lshl_b32 s39, s30, 1\ns_add_u32 s38, s38, s39\ns_lshl_b32 s38, s38, 2\ns_lshr_b32 s39, s33, 1\ns_add_u32 s38, s38, s39\ns_mul_i32 s38, s38, 18432")
e("v_lshlrev_b32 v16, 4, v1\nv_add_u32 v16, s38, v16")
for c in range(2):
    for s in range(18):
        if s % 4 == 0:
            e("v_add_u32 v%d, %d, v16" % (17 + (s // 4), c * WFC + (s // 4) * 4096))
        w = 112 + 72 * c + 4 * s
        e("global_load_dwordx4 v[%d:%d], v%d, s[100:101] offset:%d sc1" % (w, w + 3, 17 + s // 4, (s % 4) * 1024))
e("s_cmp_eq_u32 s33, 0\ns_cbranch_scc0 s1_nw0")
final_stats()
e("s_cmp_eq_u32 s29, 0\ns_cbranch_scc0 s1_nw0\nv_mov_b32 v16, s34\nv_mov_b32 v17, 0\ns_mov_b64 exec, 1\nglobal_store_dword v17, v16, s[62:63] sc0 sc1\ns_mov_b64 exec, -1")
lab("s1_nw0")
e("s_cmp_eq_u32 s33, 1\ns_cbranch_scc0 s1_nw1")
e("v_lshlrev_b32 v16, 2, v1\nv_add_u32 v16, %d, v16" % EMBP)
for k in range(8): e("ds_read_b32 v%d, v16 offset:%d" % (32 + k, k * 256))
e("s_waitcnt lgkmcnt(0)")
e("v_add_f32 v32, v32, v33\nv_add_f32 v34, v34, v35\nv_add_f32 v36, v36, v37\nv_add_f32 v38, v38, v39\nv_add_f32 v32, v32, v34\nv_add_f32 v36, v36, v38\nv_add_f32 v32, v32, v36")
e("ds_write_b32 v16, v32 offset:%d" % (EMB - EMBP))
lab("s1_nw1")
e("s_waitcnt lgkmcnt(0)\ns_barrier")
coefs(104, 108)
stamp()
norm_phase(36, "c1")
e("s_waitcnt lgkmcnt(0)\ns_barrier")
stamp()
mfma_phase(0)
e("s_waitcnt lgkmcnt(0)\ns_barrier")
stamp()
red_read()
e("v_and_b32 v3, 7, v0\nv_lshlrev_b32 v3, 5, v3\nv_add_u32 v3, %d, v3\nds_read_b128 v[24:27], v3\nds_read_b128 v[28:31], v3 offset:16" % EMB)
e("v_lshrrev_b32 v20, 3, v0\nv_lshrrev_b32 v21, 4, v20\nv_and_b32 v20, 15, v20\nv_lshl_add_u32 v20, v21, 6, v20\nv_lshlrev_b32 v20, 8, v20\nv_and_b32 v21, 7, v0\nv_lshl_add_u32 v20, v21, 4, v20")
e("s_lshl_b32 s38, s31, 16\ns_lshl_b32 s39, s32, 12\ns_add_u32 s38, s38, s39\ns_lshl_b32 s39, s30, 7\ns_add_u32 s38, s38, s39\nv_add_u32 v20, s38, v20")
e("s_waitcnt lgkmcnt(6)")
for d in range(4):
    e("v_pk_add_f32 v[%d:%d], v[%d:%d], v[%d:%d]" % (32 + 2 * d, 33 + 2 * d, 32 + 2 * d, 33 + 2 * d, 40 + 2 * d, 41 + 2 * d))
e("s_waitcnt lgkmcnt(2)")
for d in range(4):
    e("v_pk_add_f32 v[%d:%d], v[%d:%d], v[%d:%d]" % (48 + 2 * d, 49 + 2 * d, 48 + 2 * d, 49 + 2 * d, 56 + 2 * d, 57 + 2 * d))
e("s_waitcnt lgkmcnt(0)")
for d in range(4):
    e("v_pk_add_f32 v[%d:%d], v[%d:%d], v[%d:%d]" % (32 + 2 * d, 33 + 2 * d, 32 + 2 * d, 33 + 2 * d, 24 + 2 * d, 25 + 2 * d))
for d in range(4):
    e("v_pk_add_f32 v[%d:%d], v[%d:%d], v[%d:%d]" % (32 + 2 * d, 33 + 2 * d, 32 + 2 * d, 33 + 2 * d, 48 + 2 * d, 49 + 2 * d))
for d in range(4):
    e("v_cvt_pk_bf16_f32 v%d, v%d, v%d" % (16 + d, 32 + 2 * d, 33 + 2 * d))
e("global_store_dwordx4 v20, v[16:19], s[98:99] sc0 sc1")
e("v_mov_b32 v21, 0x3f803f80\nv_mov_b32 v4, 0\nv_mov_b32 v5, 0")
for d in range(4):
    e("v_dot2_f32_bf16 v4, v%d, v21, v4\nv_dot2_f32_bf16 v5, v%d, v%d, v5" % (16 + d, 16 + d, 16 + d))
e("s_nop 3")
for qp in ("[1,0,3,2]", "[2,3,0,1]"):
    e("v_add_f32_dpp v4, v4, v4 quad_perm:%s row_mask:0xf bank_mask:0xf\nv_add_f32_dpp v5, v5, v5 quad_perm:%s row_mask:0xf bank_mask:0xf\ns_nop 0" % (qp, qp))
e("v_add_f32_dpp v4, v4, v4 row_ror:8 row_mask:0xf bank_mask:0xf\nv_add_f32_dpp v5, v5, v5 row_ror:8 row_mask:0xf bank_mask:0xf\ns_nop 0")
redrows("v4", "v5", "v22", "v23")
e("v_bfe_u32 v22, v1, 2, 1\ns_lshl_b32 s38, s33, 1\nv_add_u32 v22, s38, v22\nv_lshlrev_b32 v22, 3, v22\nv_add_u32 v22, %d, v22" % PART)
e("s_mov_b64 exec, 0x11\nds_write_b64 v22, v[4:5]\ns_mov_b64 exec, -1\ns_waitcnt lgkmcnt(0)\ns_barrier")
e("s_cmp_eq_u32 s33, 0\ns_cbranch_scc0 e1_nw0")
part_reduce()
lab("e1_nw0")
e("s_waitcnt vmcnt(0)\ns_barrier")
e("s_cmp_eq_u32 s33, 0\ns_cbranch_scc0 p2_skip")
publish(96)
stamp()
poll(92, "p2")
lab("p2_skip")
e("s_barrier")
stamp()
tile_loads(98)
e("s_cmp_eq_u32 s33, 0\ns_cbranch_scc0 s2_nw0")
final_stats()
lab("s2_nw0")
e("s_waitcnt lgkmcnt(0)\ns_barrier")
coefs(68, 72)
norm_phase(0, "c2")
e("s_waitcnt lgkmcnt(0)\ns_barrier")
stamp()
mfma_phase(1)
e("s_waitcnt lgkmcnt(0)\ns_barrier")
stamp()
red_read()
for d in range(4):
    e("v_lshlrev_b32 v%d, 16, v%d\nv_and_b32 v%d, 0xffff0000, v%d" % (24 + 2 * d, 76 + d, 25 + 2 * d, 76 + d))
red_sum(24)
for d in range(4):
    e("v_cvt_pk_bf16_f32 v%d, v%d, v%d" % (16 + d, 32 + 2 * d, 33 + 2 * d))
e("global_store_dwordx4 v67, v[16:19], s[22:23]")
if STAMPS:
    e("s_waitcnt vmcnt(0)")
    stamp()
    n = nst[0]
    e("s_waitcnt lgkmcnt(0)\ns_cmp_eq_u32 s33, 0\ns_cbranch_scc0 end")
    e("s_mul_i32 s38, s2, %d\ns_add_u32 s38, s38, %d\ns_add_u32 s36, s26, s38\ns_addc_u32 s37, s27, 0\nv_mov_b32 v1, 0\ns_mov_b64 exec, 1" % (n * 8, 1 << 24))
    for k in range(n):
        e("v_mov_b32 v2, s%d\nv_mov_b32 v3, s%d\nglobal_store_dwordx2 v1, v[2:3], s[36:37] offset:%d\ns_nop 1" % (64 + 2 * k, 65 + 2 * k, 8 * k))
    sys.stderr.write("stamps: %d\n" % n)
lab("end")
e("s_endpgm")

ref = open("standalone__adm_resblock__diffusion.s.ref").read().split("\n")
head = []
for ln in ref:
    if ln.startswith("; @launch"):
        head.append("; @launch grid=(256,1,1) block=(512,1,1) lds=%d" % LDS); continue
    head.append(ln)
    if ln.startswith("standalone__adm_resblock__diffusion_kernel:"): break
tail = """.section .rodata,"a"
.p2align 6
.amdhsa_kernel standalone__adm_resblock__diffusion_kernel
  .amdhsa_next_free_vgpr 256
  .amdhsa_next_free_sgpr 102
  .amdhsa_accum_offset 256
  .amdhsa_group_segment_fixed_size 0
  .amdhsa_kernarg_size 96
  .amdhsa_user_sgpr_count 2
  .amdhsa_user_sgpr_kernarg_segment_ptr 1
  .amdhsa_system_sgpr_workgroup_id_x 1
.end_amdhsa_kernel
"""
open(OUT, "w").write("\n".join(head) + "\n" + "\n".join(L) + "\n" + tail)
```

```python
import sys
STAMPS = "--stamps" in sys.argv
OUT = [a for a in sys.argv[1:] if not a.startswith("--")][0]
OPT = {a.split("=")[0][2:]: int(a.split("=")[1]) for a in sys.argv[1:] if a.startswith("--") and "=" in a}
L = []
def e(s):
    for ln in s.strip("\n").split("\n"):
        L.append("    " + ln.strip())
def lab(s): L.append(s + ":")

ACT = 0; RED = 30720; QP = 17408
TB = RED; RAW = RED + 9216
MISC = RED + 4 * QP
ST = MISC; PART = MISC + 64; EMBP = MISC + 256; EMB = EMBP + 2048
LDS = EMB + 256
SLOT1 = 4096; SLOT2 = 16384; XT = 1 << 20; HB = 4 << 20; WF = 8 << 20; WFC = 294912
SLEEP = OPT.get("sleep", 8)
nst = [0]
def stamp():
    if STAMPS:
        k = nst[0]; nst[0] += 1
        e("s_memrealtime s[%d:%d]" % (64 + 2 * k, 65 + 2 * k))

def red16(a, b):
    for r in (8, 4, 2, 1):
        e("v_add_f32_dpp %s, %s, %s row_ror:%d row_mask:0xf bank_mask:0xf" % (a, a, a, r))
        e("v_add_f32_dpp %s, %s, %s row_ror:%d row_mask:0xf bank_mask:0xf" % (b, b, b, r))
        e("s_nop 0")
def redrows(a, b, ta, tb):
    for op in ("v_permlane16_swap_b32", "v_permlane32_swap_b32"):
        e("v_mov_b32 %s, %s\nv_mov_b32 %s, %s\ns_nop 1" % (ta, a, tb, b))
        e("%s %s, %s\n%s %s, %s\ns_nop 1" % (op, a, ta, op, b, tb))
        e("v_add_f32 %s, %s, %s\nv_add_f32 %s, %s, %s\ns_nop 1" % (a, a, ta, b, b, tb))

def reduce_parts():
    pass

def publish(slot_s):
    e("s_mov_b64 exec, 3")
    e("v_mov_b32 v6, s34\nv_mov_b32 v7, 0\nv_lshlrev_b32 v16, 4, v1")
    e("global_store_dwordx4 v16, v[4:7], s[%d:%d] sc0 sc1" % (slot_s, slot_s + 1))
    e("s_mov_b64 exec, -1")

def poll(slot_s, name):
    e("v_lshlrev_b32 v16, 4, v1\ns_mov_b32 s40, 0x20000")
    lab(name + "_loop")
    for k in range(4):
        e("global_load_dwordx4 v[%d:%d], v16, s[%d:%d] offset:%d sc1" % (32 + 4 * k, 35 + 4 * k, slot_s, slot_s + 1, k * 1024))
    e("s_waitcnt vmcnt(0)")
    e("v_cmp_eq_u32 vcc, s34, v34\nv_cmp_eq_u32 s[42:43], s34, v38\nv_cmp_eq_u32 s[52:53], s34, v42\nv_cmp_eq_u32 s[54:55], s34, v46")
    e("s_nop 1\ns_and_b64 vcc, vcc, s[42:43]\ns_and_b64 s[52:53], s[52:53], s[54:55]\ns_and_b64 vcc, vcc, s[52:53]")
    e("s_cmp_eq_u64 vcc, -1")
    e("s_cbranch_scc1 %s_done" % name)
    e("s_sleep %d\ns_sub_u32 s40, s40, 1\ns_cmp_lg_u32 s40, 0\ns_cbranch_scc1 %s_loop" % (SLEEP, name))
    lab(name + "_done")

def final_stats():
    e("v_add_f32 v32, v32, v36\nv_add_f32 v33, v33, v37\nv_add_f32 v40, v40, v44\nv_add_f32 v41, v41, v45")
    e("v_add_f32 v32, v32, v40\nv_add_f32 v33, v33, v41\ns_nop 1")
    for r in (8, 4):
        e("v_add_f32_dpp v32, v32, v32 row_ror:%d row_mask:0xf bank_mask:0xf" % r)
        e("v_add_f32_dpp v33, v33, v33 row_ror:%d row_mask:0xf bank_mask:0xf\ns_nop 0" % r)
    redrows("v32", "v33", "v34", "v35")
    e("v_mul_f32 v32, 0x37000000, v32\nv_mul_f32 v33, 0x37000000, v33")
    e("v_fma_f32 v33, -v32, v32, v33\nv_max_f32 v33, 0, v33\nv_add_f32 v33, 0x3727c5ac, v33")
    e("v_rsq_f32 v33, v33\nv_lshlrev_b32 v34, 3, v1\nv_add_u32 v34, %d, v34" % ST)
    e("s_mov_b64 exec, 15\nds_write_b64 v34, v[32:33]\ns_mov_b64 exec, -1")

def tile_loads(base_s):
    e("s_cmp_lt_u32 s33, 3\ns_cbranch_scc0 %s" % ("skip3_%d" % base_s))
    e("global_load_dwordx4 v[60:63], v11, s[%d:%d] sc1" % (base_s, base_s + 1))
    lab("skip3_%d" % base_s)
    for r in range(3):
        e("global_load_dwordx4 v[%d:%d], v%d, s[%d:%d] sc1" % (48 + 4 * r, 51 + 4 * r, 8 + r, base_s, base_s + 1))

def coefs(g0, b0):
    e("v_bfe_u32 v16, v0, 2, 2\nv_lshlrev_b32 v16, 3, v16\nv_add_u32 v16, %d, v16\nds_read_b64 v[16:17], v16" % ST)
    for d in range(4):
        e("v_lshlrev_b32 v%d, 16, v%d\nv_and_b32 v%d, 0xffff0000, v%d" % (32 + 2 * d, g0 + d, 33 + 2 * d, g0 + d))
        e("v_lshlrev_b32 v%d, 16, v%d\nv_and_b32 v%d, 0xffff0000, v%d" % (40 + 2 * d, b0 + d, 41 + 2 * d, b0 + d))
    e("s_waitcnt lgkmcnt(0)")
    for d in range(4):
        e("v_pk_mul_f32 v[%d:%d], v[%d:%d], v[16:17] op_sel:[0,1] op_sel_hi:[1,1]" % (32 + 2 * d, 33 + 2 * d, 32 + 2 * d, 33 + 2 * d))
    for d in range(4):
        e("v_pk_fma_f32 v[%d:%d], v[%d:%d], v[16:17], v[%d:%d] op_sel:[0,0,0] op_sel_hi:[1,0,1] neg_lo:[1,0,0] neg_hi:[1,0,0]" % (40 + 2 * d, 41 + 2 * d, 32 + 2 * d, 33 + 2 * d, 40 + 2 * d, 41 + 2 * d))

def norm_round(r):
    src = 48 + 4 * r
    for d in range(4):
        e("v_lshlrev_b32 v%d, 16, v%d\nv_and_b32 v%d, 0xffff0000, v%d" % (16 + 2 * d, src + d, 17 + 2 * d, src + d))
    for d in range(4):
        e("v_pk_fma_f32 v[%d:%d], v[%d:%d], v[%d:%d], v[%d:%d]" % (16 + 2 * d, 17 + 2 * d, 16 + 2 * d, 17 + 2 * d, 32 + 2 * d, 33 + 2 * d, 40 + 2 * d, 41 + 2 * d))
    for d in range(4):
        e("v_pk_mul_f32 v[%d:%d], v[%d:%d], s[56:57]" % (24 + 2 * d, 25 + 2 * d, 16 + 2 * d, 17 + 2 * d))
    for d in range(8):
        e("v_exp_f32 v%d, v%d" % (24 + d, 24 + d))
    for d in range(4):
        e("v_pk_add_f32 v[%d:%d], v[%d:%d], s[58:59]" % (24 + 2 * d, 25 + 2 * d, 24 + 2 * d, 25 + 2 * d))
    for d in range(8):
        e("v_rcp_f32 v%d, v%d" % (24 + d, 24 + d))
    for d in range(4):
        e("v_pk_mul_f32 v[%d:%d], v[%d:%d], v[%d:%d]" % (16 + 2 * d, 17 + 2 * d, 16 + 2 * d, 17 + 2 * d, 24 + 2 * d, 25 + 2 * d))
    for d in range(4):
        e("v_cvt_pk_bf16_f32 v%d, v%d, v%d" % (24 + d, 16 + 2 * d, 17 + 2 * d))
    for d in range(4):
        e("v_cndmask_b32 v%d, 0, v%d, s[%d:%d]" % (24 + d, 24 + d, 44 + 2 * r, 45 + 2 * r))
    e("ds_write_b128 v%d, v[24:27]" % (12 + r))

def norm_phase(conv, tag):
    n = [W1PRE if conv == 0 else 0]
    rest = 18 - n[0] if conv == 0 else 0
    per = [(rest + 2) // 3, (rest + 1) // 3, rest // 3]
    def more(k):
        for _ in range(per[k]):
            wload(0, n[0]); n[0] += 1
    e("s_waitcnt vmcnt(%d)" % (n[0] + 2))
    more(0)
    norm_round(0)
    e("s_cmp_lt_u32 s33, 3\ns_cbranch_scc0 nskip3_%s" % tag)
    norm_round(3)
    lab("nskip3_%s" % tag)
    e("s_waitcnt vmcnt(%d)" % (n[0] + 1))
    more(1)
    norm_round(1)
    e("s_waitcnt vmcnt(%d)" % n[0])
    more(2)
    norm_round(2)

W1PRE = OPT.get("w1pre", 4)
def wload(c, s):
    w = 112 + 72 * c + 4 * s
    a = 64 + c
    e("global_load_dwordx4 v[%d:%d], v%d, s[100:101] offset:%d sc1" % (w, w + 3, a, (s % 4) * 1024))
    if s % 4 == 3: e("v_add_u32 v%d, 4096, v%d" % (a, a))

def mfma_phase(conv):
    W = 112 if conv == 0 else 184
    e("v_bfe_u32 v16, v1, 4, 1\nv_mul_u32_u24 v16, 5120, v16\nv_and_b32 v17, 15, v1\nv_mad_u32_u24 v16, v17, s60, v16")
    e("v_lshrrev_b32 v17, 5, v1\nv_lshl_add_u32 v16, v17, 4, v16\ns_lshr_b32 s42, s33, 1\ns_lshl_b32 s42, s42, 6\nv_add_u32 v16, s42, v16")
    def rd(k):
        s, mt = k >> 1, k & 1
        j, t = divmod(s, 9); dy, dx = divmod(t, 3)
        off = ACT + mt * 2 * 5120 + dy * 5120 + dx * 272 + j * 32
        b = 32 + 4 * (k % 8)
        e("ds_read_b128 v[%d:%d], v16 offset:%d" % (b, b + 3, off))
    NP = 7
    for k in range(NP): rd(k)
    for k in range(36):
        s, mt = k >> 1, k & 1
        if conv == 0 and mt == 0:
            e("s_waitcnt vmcnt(%d) lgkmcnt(%d)" % (17 - s + s, min(NP - 1, 35 - k)))
        else:
            e("s_waitcnt lgkmcnt(%d)" % min(NP - 1, 35 - k))
        b = 32 + 4 * (k % 8); acc = 80 + 16 * mt; w = W + 4 * s
        c = "0" if s == 0 else "v[%d:%d]" % (acc, acc + 15)
        if conv == 0:
            e("v_mfma_f32_32x32x16_bf16 v[%d:%d], v[%d:%d], v[%d:%d], %s" % (acc, acc + 15, w, w + 3, b, b + 3, c))
        else:
            e("v_mfma_f32_32x32x16_bf16 v[%d:%d], v[%d:%d], v[%d:%d], %s" % (acc, acc + 15, b, b + 3, w, w + 3, c))
        if k + NP < 36: rd(k + NP)
        if conv == 0 and mt == 1: wload(1, s)
    e("v_and_b32 v17, 31, v1\nv_mul_u32_u24 v16, 272, v17\nv_lshrrev_b32 v17, 5, v1\nv_lshl_add_u32 v16, v17, 4, v16")
    e("s_lshr_b32 s42, s33, 1\ns_mul_i32 s42, s42, %d\ns_and_b32 s43, s33, 1" % QP)
    if conv == 0:
        e("s_lshl_b32 s43, s43, 7"); mo = 8704
    else:
        e("s_mul_i32 s43, s43, 8704"); mo = 128
    e("s_add_u32 s42, s42, s43\ns_add_u32 s42, s42, %d\nv_add_u32 v16, s42, v16" % RED)
    e("s_nop 7")
    for mt in range(2):
        for i in range(4):
            a = 80 + 16 * mt + 4 * i
            e("ds_write_b128 v16, v[%d:%d] offset:%d" % (a, a + 3, mt * mo + i * 32))

def red_read():
    e("v_lshrrev_b32 v2, 3, v0\nv_mul_u32_u24 v2, 272, v2\nv_and_b32 v3, 7, v0\nv_lshl_add_u32 v2, v3, 5, v2\nv_add_u32 v2, %d, v2" % RED)
    for q in range(4):
        for h in range(2):
            b = 32 + 8 * q + 4 * h
            e("ds_read_b128 v[%d:%d], v2 offset:%d" % (b, b + 3, q * QP + h * 16))

def red_sum(extra):
    e("s_waitcnt lgkmcnt(4)")
    for d in range(4):
        e("v_pk_add_f32 v[%d:%d], v[%d:%d], v[%d:%d]" % (32 + 2 * d, 33 + 2 * d, 32 + 2 * d, 33 + 2 * d, 40 + 2 * d, 41 + 2 * d))
    if extra is not None:
        for d in range(4):
            e("v_pk_add_f32 v[%d:%d], v[%d:%d], v[%d:%d]" % (32 + 2 * d, 33 + 2 * d, 32 + 2 * d, 33 + 2 * d, extra + 2 * d, extra + 1 + 2 * d))
    e("s_waitcnt lgkmcnt(0)")
    for d in range(4):
        e("v_pk_add_f32 v[%d:%d], v[%d:%d], v[%d:%d]" % (48 + 2 * d, 49 + 2 * d, 48 + 2 * d, 49 + 2 * d, 56 + 2 * d, 57 + 2 * d))
    for d in range(4):
        e("v_pk_add_f32 v[%d:%d], v[%d:%d], v[%d:%d]" % (32 + 2 * d, 33 + 2 * d, 32 + 2 * d, 33 + 2 * d, 48 + 2 * d, 49 + 2 * d))

def part_reduce():
    e("v_and_b32 v16, 15, v1\nv_lshlrev_b32 v16, 3, v16\nv_add_u32 v16, %d, v16\nds_read_b64 v[4:5], v16\ns_waitcnt lgkmcnt(0)" % PART)
    e("v_add_f32_dpp v4, v4, v4 quad_perm:[2,3,0,1] row_mask:0xf bank_mask:0xf\nv_add_f32_dpp v5, v5, v5 quad_perm:[2,3,0,1] row_mask:0xf bank_mask:0xf\ns_nop 0")
    for r in (4, 8):
        e("v_add_f32_dpp v4, v4, v4 row_ror:%d row_mask:0xf bank_mask:0xf\nv_add_f32_dpp v5, v5, v5 row_ror:%d row_mask:0xf bank_mask:0xf\ns_nop 0" % (r, r))

e("s_cmp_ge_u32 s2, 256\ns_cbranch_scc1 end")
stamp()
e("s_load_dwordx16 s[4:19], s[0:1], 0\ns_load_dwordx8 s[20:27], s[0:1], 64")
e("""
v_and_b32 v1, 63, v0
v_lshrrev_b32 v2, 6, v0
s_bfe_u32 s28, s2, 0x10002
s_and_b32 s35, s2, 3
s_lshr_b32 s36, s2, 3
v_readfirstlane_b32 s33, v2
s_lshl_b32 s29, s35, 5
s_or_b32 s29, s29, s36
s_and_b32 s30, s36, 1
s_lshr_b32 s31, s36, 3
s_lshl_b32 s35, s35, 2
s_or_b32 s31, s31, s35
s_bfe_u32 s32, s36, 0x20001
s_mov_b32 s56, 0xbfb8aa3b
s_mov_b32 s57, 0xbfb8aa3b
s_mov_b32 s58, 1.0
s_mov_b32 s59, 1.0
s_movk_i32 s60, 272
""")
e("v_lshlrev_b32 v24, 1, v1")
for j in range(1, 8): e("v_add_u32 v%d, %d, v24" % (24 + j, j * 8192))
e("""
v_and_b32 v2, 255, v0
v_min_u32 v2, 143, v2
v_mul_u32_u24 v3, 3641, v2
v_lshrrev_b32 v3, 16, v3
v_mul_u32_u24 v4, 18, v3
v_sub_u32 v4, v2, v4
v_mul_u32_u24 v3, 2304, v3
v_lshl_add_u32 v3, v4, 4, v3
s_lshr_b32 s36, s29, 3
s_and_b32 s37, s29, 7
s_mul_i32 s38, s36, 18432
s_mul_i32 s39, s37, 288
s_add_u32 s38, s38, s39
v_add_u32 v3, s38, v3
""")
e("""
v_lshrrev_b32 v5, 3, v0
v_lshlrev_b32 v5, 13, v5
v_bfe_u32 v6, v0, 1, 2
v_lshl_add_u32 v5, v6, 7, v5
v_and_b32 v6, 1, v0
v_lshl_add_u32 v5, v6, 4, v5
s_lshl_b32 s38, s28, 20
s_lshl_b32 s39, s30, 19
s_add_u32 s38, s38, s39
s_lshl_b32 s39, s31, 9
s_add_u32 s38, s38, s39
s_lshl_b32 s39, s32, 5
s_add_u32 s38, s38, s39
v_add_u32 v67, s38, v5
v_and_b32 v6, 15, v0
v_lshlrev_b32 v6, 4, v6
""")
e("""
v_lshrrev_b32 v7, 3, v0
v_lshlrev_b32 v22, 1, v7
v_lshlrev_b32 v7, 8, v7
v_and_b32 v21, 7, v0
v_lshl_add_u32 v7, v21, 4, v7
s_lshl_b32 s39, s30, 7
v_add_u32 v7, s39, v7
s_mul_i32 s39, s28, 768
v_add_u32 v22, s39, v22
""")
e("s_waitcnt lgkmcnt(0)")
e("""
s_lshl_b32 s38, s28, 20
s_lshl_b32 s39, s30, 19
s_add_u32 s38, s38, s39
s_lshl_b32 s39, s33, 16
s_add_u32 s38, s38, s39
s_lshr_b32 s39, s29, 1
s_lshl_b32 s39, s39, 7
s_add_u32 s38, s38, s39
s_add_u32 s36, s4, s38
s_addc_u32 s37, s5, 0
""")
for j in range(8): e("global_load_ushort v%d, v%d, s[36:37]" % (16 + j if j < 4 else 8 + j - 4, 24 + j))
e("s_cmp_lt_u32 s33, 4\ns_cselect_b32 s38, s12, s20\ns_cselect_b32 s39, s13, s21")
e("global_load_dwordx4 v[48:51], v3, s[38:39]")
e("global_load_dwordx4 v[76:79], v67, s[4:5]")
e("global_load_dwordx4 v[104:107], v6, s[8:9]\nglobal_load_dwordx4 v[108:111], v6, s[10:11]")
e("global_load_dwordx4 v[68:71], v6, s[16:17]\nglobal_load_dwordx4 v[72:75], v6, s[18:19]")
for p in range(6): e("global_load_ushort v%d, v22, s[6:7] offset:%d" % (96 + p, p * 128))
for p in range(6):
    if p: e("v_add_u32 v7, 16384, v7")
    e("global_load_dwordx4 v[%d:%d], v7, s[14:15]" % (112 + 4 * p, 115 + 4 * p))
e("""
s_lshl_b32 s38, s28, 8
s_add_u32 s62, s26, s38
s_addc_u32 s63, s27, 0
s_load_dword s34, s[62:63], 0
s_lshl_b32 s38, s28, 12
s_add_u32 s90, s26, s38
s_addc_u32 s91, s27, 0
s_add_u32 s92, s90, %d
s_addc_u32 s93, s91, 0
s_add_u32 s90, s90, %d
s_addc_u32 s91, s91, 0
s_lshl_b32 s38, s29, 5
s_add_u32 s94, s90, s38
s_addc_u32 s95, s91, 0
s_add_u32 s96, s92, s38
s_addc_u32 s97, s93, 0
s_lshl_b32 s38, s28, 20
s_add_u32 s38, s38, %d
s_add_u32 s88, s26, s38
s_addc_u32 s89, s27, 0
s_add_u32 s98, s88, %d
s_addc_u32 s99, s89, 0
s_mul_i32 s38, s28, %d
s_add_u32 s38, s38, %d
s_add_u32 s100, s26, s38
s_addc_u32 s101, s27, 0
""" % (SLOT2, SLOT1, XT, HB - XT, 2 * WFC, WF))
e("s_waitcnt vmcnt(18)")
e("v_lshl_or_b32 v16, v17, 16, v16\nv_lshl_or_b32 v17, v19, 16, v18\nv_lshl_or_b32 v18, v9, 16, v8\nv_lshl_or_b32 v19, v11, 16, v10")
e("v_mul_u32_u24 v20, 144, v1\ns_lshl_b32 s38, s33, 4\ns_add_u32 s38, s38, %d\nv_add_u32 v20, s38, v20\nds_write_b128 v20, v[16:19]" % TB)
e("v_mov_b32 v21, 0x3f803f80\nv_mov_b32 v4, 0\nv_mov_b32 v5, 0")
for d in range(4):
    e("v_dot2_f32_bf16 v4, v%d, v21, v4\nv_dot2_f32_bf16 v5, v%d, v%d, v5" % (16 + d, 16 + d, 16 + d))
e("s_nop 3")
red16("v4", "v5")
redrows("v4", "v5", "v20", "v21")
e("s_lshr_b32 s39, s33, 2\nv_cmp_eq_u32 vcc, s39, v1\ns_lshl_b32 s38, s33, 4\ns_add_u32 s38, s38, %d\nv_lshlrev_b32 v20, 3, v1\nv_add_u32 v20, s38, v20" % PART)
e("v_cndmask_b32 v4, 0, v4, vcc\nv_cndmask_b32 v5, 0, v5, vcc\ns_mov_b64 exec, 3\nds_write_b64 v20, v[4:5]\ns_mov_b64 exec, -1")
e("v_lshrrev_b32 v20, 8, v0\nv_mul_u32_u24 v20, 2304, v20\nv_lshl_add_u32 v20, v2, 4, v20\ns_waitcnt vmcnt(17)\nds_write_b128 v20, v[48:51] offset:%d" % RAW)
for r in range(4):
    e("""
    v_lshrrev_b32 v24, 4, v0
    v_add_u32 v24, %d, v24
    v_mul_u32_u24 v25, 3641, v24
    v_lshrrev_b32 v25, 16, v25
    v_mul_u32_u24 v26, 18, v25
    v_sub_u32 v26, v24, v26
    v_mul_u32_u24 v27, 5120, v25
    v_mad_u32_u24 v27, v26, s60, v27
    v_add_u32 v%d, v27, v6
    s_lshl_b32 s38, s31, 2
    s_sub_u32 s38, s38, 1
    s_lshl_b32 s39, s32, 4
    s_sub_u32 s39, s39, 1
    v_add_u32 v25, s38, v25
    v_add_u32 v26, s39, v26
    v_cmp_gt_u32 vcc, 64, v25
    v_cmp_gt_u32 s[%d:%d], 64, v26
    v_med3_i32 v25, v25, 0, 63
    v_med3_i32 v26, v26, 0, 63
    s_and_b64 s[%d:%d], s[%d:%d], vcc
    v_lshl_add_u32 v25, v25, 6, v26
    v_lshl_add_u32 v%d, v25, 8, v6
    """ % (32 * r, 12 + r, 44 + 2 * r, 45 + 2 * r, 44 + 2 * r, 45 + 2 * r, 44 + 2 * r, 45 + 2 * r, 8 + r))
e("s_waitcnt lgkmcnt(0)\ns_barrier")
stamp()
e("v_lshrrev_b32 v20, 3, v0\nv_mul_u32_u24 v21, 144, v20\nv_and_b32 v22, 7, v0\nv_lshl_add_u32 v21, v22, 4, v21\nds_read_b128 v[16:19], v21 offset:%d" % TB)
e("v_lshlrev_b32 v20, 8, v20\nv_lshl_add_u32 v20, v22, 4, v20\ns_lshr_b32 s38, s29, 1\ns_lshl_b32 s38, s38, 14\ns_lshl_b32 s39, s30, 7\ns_add_u32 s38, s38, s39\nv_add_u32 v20, s38, v20")
e("""
v_lshrrev_b32 v24, 4, v2
v_bfe_u32 v25, v2, 3, 1
v_and_b32 v26, 7, v2
v_mul_u32_u24 v27, 288, v26
v_mul_u32_u24 v28, 144, v25
v_add_u32 v27, v27, v28
v_lshl_add_u32 v27, v24, 1, v27
v_lshrrev_b32 v28, 8, v0
v_mul_u32_u24 v29, 2304, v28
v_add_u32 v27, v27, v29
""")
for k in range(8): e("ds_read_u16 v%d, v27 offset:%d" % (32 + k, RAW + k * 18))
e("""
s_lshr_b32 s36, s29, 3
s_and_b32 s37, s29, 7
s_lshr_b32 s38, s36, 2
s_lshl_b32 s38, s38, 2
s_lshr_b32 s39, s37, 1
s_add_u32 s38, s38, s39
s_mul_i32 s38, s38, 18432
s_and_b32 s39, s37, 1
s_mul_i32 s39, s39, 9216
s_add_u32 s38, s38, s39
s_and_b32 s39, s36, 3
s_lshl_b32 s39, s39, 7
s_add_u32 s38, s38, s39
v_mul_u32_u24 v28, %d, v28
v_lshl_add_u32 v28, v24, 10, v28
v_lshl_add_u32 v28, v25, 9, v28
v_lshl_add_u32 v28, v26, 4, v28
v_add_u32 v28, s38, v28
""" % WFC)
e("s_waitcnt lgkmcnt(8)\nglobal_store_dwordx4 v20, v[16:19], s[88:89] sc0 sc1")
e("s_waitcnt lgkmcnt(0)")
for d in range(4): e("v_lshl_or_b32 v%d, v%d, 16, v%d" % (32 + d, 33 + 2 * d, 32 + 2 * d))
e("v_and_b32 v24, 255, v0\nv_cmp_gt_u32 vcc, 144, v24\ns_and_saveexec_b64 s[42:43], vcc\ns_cbranch_execz nowf")
e("global_store_dwordx4 v28, v[32:35], s[100:101] sc0 sc1")
lab("nowf")
e("s_mov_b64 exec, -1")
e("s_cmp_eq_u32 s33, 0\ns_cbranch_scc0 a_nw0")
part_reduce()
e("s_mul_i32 s34, s34, 0x9e3779b1\ns_add_u32 s34, s34, 0x7f4a7c15")
lab("a_nw0")
e("s_waitcnt vmcnt(0)\ns_barrier")
e("s_cmp_eq_u32 s33, 0\ns_cbranch_scc0 a_nw0b")
publish(94)
lab("a_nw0b")
stamp()
for p in range(6): e("v_lshlrev_b32 v%d, 16, v%d" % (96 + p, 96 + p))
for p in range(6): e("v_mul_f32 v%d, s56, v%d" % (16 + p, 96 + p))
for p in range(6): e("v_exp_f32 v%d, v%d" % (16 + p, 16 + p))
for p in range(6): e("v_add_f32 v%d, 1.0, v%d" % (16 + p, 16 + p))
for p in range(6): e("v_rcp_f32 v%d, v%d" % (16 + p, 16 + p))
for p in range(6): e("v_mul_f32 v%d, v%d, v%d" % (96 + 2 * p if False else 32 + 2 * p, 96 + p, 16 + p))
for p in range(6):
    for d in range(4):
        e("v_lshlrev_b32 v%d, 16, v%d\nv_and_b32 v%d, 0xffff0000, v%d" % (24 + 2 * d, 112 + 4 * p + d, 25 + 2 * d, 112 + 4 * p + d))
    for d in range(4):
        if p == 0:
            e("v_pk_mul_f32 v[%d:%d], v[%d:%d], v[32:33] op_sel_hi:[1,0]" % (16 + 2 * d, 17 + 2 * d, 24 + 2 * d, 25 + 2 * d))
        else:
            e("v_pk_fma_f32 v[%d:%d], v[%d:%d], v[%d:%d], v[%d:%d] op_sel_hi:[1,0,1]" % (16 + 2 * d, 17 + 2 * d, 24 + 2 * d, 25 + 2 * d, 32 + 2 * p, 33 + 2 * p, 16 + 2 * d, 17 + 2 * d))
e("s_nop 1")
for d in range(8): e("v_add_f32_dpp v%d, v%d, v%d row_ror:8 row_mask:0xf bank_mask:0xf" % (16 + d, 16 + d, 16 + d))
e("s_nop 1")
for d in range(4): e("v_permlane16_swap_b32 v%d, v%d" % (16 + 2 * d, 17 + 2 * d))
e("s_nop 1")
for d in range(4): e("v_add_f32 v%d, v%d, v%d" % (16 + 2 * d, 16 + 2 * d, 17 + 2 * d))
e("s_nop 1\nv_permlane32_swap_b32 v16, v18\nv_permlane32_swap_b32 v20, v22\ns_nop 1\nv_add_f32 v16, v16, v18\nv_add_f32 v20, v20, v22")
e("v_and_b32 v24, 7, v1\nv_lshlrev_b32 v24, 3, v24\nv_lshrrev_b32 v25, 4, v1\nv_and_b32 v26, 1, v25\nv_lshrrev_b32 v25, 1, v25\nv_lshl_add_u32 v26, v25, 1, v26\nv_add_u32 v24, v24, v26")
e("v_lshlrev_b32 v24, 2, v24\ns_lshl_b32 s38, s33, 8\ns_add_u32 s38, s38, %d\nv_add_u32 v24, s38, v24\nds_write_b32 v24, v16\nds_write_b32 v24, v20 offset:16" % EMBP)
e("s_cmp_eq_u32 s33, 0\ns_cbranch_scc0 p1_skip")
poll(90, "p1")
lab("p1_skip")
e("s_waitcnt lgkmcnt(0)\ns_barrier")
stamp()
tile_loads(88)
e("s_and_b32 s38, s33, 1\ns_lshl_b32 s39, s30, 1\ns_add_u32 s38, s38, s39\ns_lshl_b32 s38, s38, 2\ns_lshr_b32 s39, s33, 1\ns_add_u32 s38, s38, s39\ns_mul_i32 s38, s38, 18432")
e("v_lshlrev_b32 v64, 4, v1\nv_add_u32 v64, s38, v64\nv_add_u32 v65, %d, v64" % WFC)
for s_ in range(W1PRE): wload(0, s_)
e("s_cmp_eq_u32 s33, 0\ns_cbranch_scc0 s1_nw0")
final_stats()
e("s_cmp_eq_u32 s29, 0\ns_cbranch_scc0 s1_nw0\nv_mov_b32 v16, s34\nv_mov_b32 v17, 0\ns_mov_b64 exec, 1\nglobal_store_dword v17, v16, s[62:63] sc0 sc1\ns_mov_b64 exec, -1")
lab("s1_nw0")
e("s_cmp_eq_u32 s33, 1\ns_cbranch_scc0 s1_nw1")
e("v_lshlrev_b32 v16, 2, v1\nv_add_u32 v16, %d, v16" % EMBP)
for k in range(8): e("ds_read_b32 v%d, v16 offset:%d" % (32 + k, k * 256))
e("s_waitcnt lgkmcnt(0)")
e("v_add_f32 v32, v32, v33\nv_add_f32 v34, v34, v35\nv_add_f32 v36, v36, v37\nv_add_f32 v38, v38, v39\nv_add_f32 v32, v32, v34\nv_add_f32 v36, v36, v38\nv_add_f32 v32, v32, v36")
e("ds_write_b32 v16, v32 offset:%d" % (EMB - EMBP))
lab("s1_nw1")
e("s_waitcnt lgkmcnt(0)\ns_barrier")
coefs(104, 108)
stamp()
norm_phase(0, "c1")
e("s_waitcnt lgkmcnt(0)\ns_barrier")
stamp()
mfma_phase(0)
e("s_waitcnt lgkmcnt(0)\ns_barrier")
stamp()
red_read()
e("v_and_b32 v3, 7, v0\nv_lshlrev_b32 v3, 5, v3\nv_add_u32 v3, %d, v3\nds_read_b128 v[24:27], v3\nds_read_b128 v[28:31], v3 offset:16" % EMB)
e("v_lshrrev_b32 v20, 3, v0\nv_lshrrev_b32 v21, 4, v20\nv_and_b32 v20, 15, v20\nv_lshl_add_u32 v20, v21, 6, v20\nv_lshlrev_b32 v20, 8, v20\nv_and_b32 v21, 7, v0\nv_lshl_add_u32 v20, v21, 4, v20")
e("s_lshl_b32 s38, s31, 16\ns_lshl_b32 s39, s32, 12\ns_add_u32 s38, s38, s39\ns_lshl_b32 s39, s30, 7\ns_add_u32 s38, s38, s39\nv_add_u32 v20, s38, v20")
e("s_waitcnt lgkmcnt(6)")
for d in range(4):
    e("v_pk_add_f32 v[%d:%d], v[%d:%d], v[%d:%d]" % (32 + 2 * d, 33 + 2 * d, 32 + 2 * d, 33 + 2 * d, 40 + 2 * d, 41 + 2 * d))
e("s_waitcnt lgkmcnt(2)")
for d in range(4):
    e("v_pk_add_f32 v[%d:%d], v[%d:%d], v[%d:%d]" % (48 + 2 * d, 49 + 2 * d, 48 + 2 * d, 49 + 2 * d, 56 + 2 * d, 57 + 2 * d))
e("s_waitcnt lgkmcnt(0)")
for d in range(4):
    e("v_pk_add_f32 v[%d:%d], v[%d:%d], v[%d:%d]" % (32 + 2 * d, 33 + 2 * d, 32 + 2 * d, 33 + 2 * d, 24 + 2 * d, 25 + 2 * d))
for d in range(4):
    e("v_pk_add_f32 v[%d:%d], v[%d:%d], v[%d:%d]" % (32 + 2 * d, 33 + 2 * d, 32 + 2 * d, 33 + 2 * d, 48 + 2 * d, 49 + 2 * d))
for d in range(4):
    e("v_cvt_pk_bf16_f32 v%d, v%d, v%d" % (16 + d, 32 + 2 * d, 33 + 2 * d))
e("global_store_dwordx4 v20, v[16:19], s[98:99] sc0 sc1")
e("v_mov_b32 v21, 0x3f803f80\nv_mov_b32 v4, 0\nv_mov_b32 v5, 0")
for d in range(4):
    e("v_dot2_f32_bf16 v4, v%d, v21, v4\nv_dot2_f32_bf16 v5, v%d, v%d, v5" % (16 + d, 16 + d, 16 + d))
e("s_nop 3")
for qp in ("[1,0,3,2]", "[2,3,0,1]"):
    e("v_add_f32_dpp v4, v4, v4 quad_perm:%s row_mask:0xf bank_mask:0xf\nv_add_f32_dpp v5, v5, v5 quad_perm:%s row_mask:0xf bank_mask:0xf\ns_nop 0" % (qp, qp))
e("v_add_f32_dpp v4, v4, v4 row_ror:8 row_mask:0xf bank_mask:0xf\nv_add_f32_dpp v5, v5, v5 row_ror:8 row_mask:0xf bank_mask:0xf\ns_nop 0")
redrows("v4", "v5", "v22", "v23")
e("v_bfe_u32 v22, v1, 2, 1\ns_lshl_b32 s38, s33, 1\nv_add_u32 v22, s38, v22\nv_lshlrev_b32 v22, 3, v22\nv_add_u32 v22, %d, v22" % PART)
e("s_mov_b64 exec, 0x11\nds_write_b64 v22, v[4:5]\ns_mov_b64 exec, -1\ns_waitcnt lgkmcnt(0)\ns_barrier")
e("s_cmp_eq_u32 s33, 0\ns_cbranch_scc0 e1_nw0")
part_reduce()
lab("e1_nw0")
e("s_waitcnt vmcnt(0)\ns_barrier")
e("s_cmp_eq_u32 s33, 0\ns_cbranch_scc0 p2_skip")
publish(96)
stamp()
poll(92, "p2")
lab("p2_skip")
e("s_barrier")
stamp()
tile_loads(98)
e("s_cmp_eq_u32 s33, 0\ns_cbranch_scc0 s2_nw0")
final_stats()
lab("s2_nw0")
e("s_waitcnt lgkmcnt(0)\ns_barrier")
coefs(68, 72)
norm_phase(1, "c2")
e("s_waitcnt lgkmcnt(0)\ns_barrier")
stamp()
mfma_phase(1)
e("s_waitcnt lgkmcnt(0)\ns_barrier")
stamp()
red_read()
for d in range(4):
    e("v_lshlrev_b32 v%d, 16, v%d\nv_and_b32 v%d, 0xffff0000, v%d" % (24 + 2 * d, 76 + d, 25 + 2 * d, 76 + d))
red_sum(24)
for d in range(4):
    e("v_cvt_pk_bf16_f32 v%d, v%d, v%d" % (16 + d, 32 + 2 * d, 33 + 2 * d))
e("global_store_dwordx4 v67, v[16:19], s[22:23]")
if STAMPS:
    e("s_waitcnt vmcnt(0)")
    stamp()
    n = nst[0]
    e("s_waitcnt lgkmcnt(0)\ns_cmp_eq_u32 s33, 0\ns_cbranch_scc0 end")
    e("s_mul_i32 s38, s2, %d\ns_add_u32 s38, s38, %d\ns_add_u32 s36, s26, s38\ns_addc_u32 s37, s27, 0\nv_mov_b32 v1, 0\ns_mov_b64 exec, 1" % (n * 8, 1 << 24))
    for k in range(n):
        e("v_mov_b32 v2, s%d\nv_mov_b32 v3, s%d\nglobal_store_dwordx2 v1, v[2:3], s[36:37] offset:%d\ns_nop 1" % (64 + 2 * k, 65 + 2 * k, 8 * k))
    sys.stderr.write("stamps: %d\n" % n)
lab("end")
e("s_endpgm")

ref = open("standalone__adm_resblock__diffusion.s.ref").read().split("\n")
head = []
for ln in ref:
    if ln.startswith("; @launch"):
        head.append("; @launch grid=(256,1,1) block=(512,1,1) lds=%d" % LDS); continue
    head.append(ln)
    if ln.startswith("standalone__adm_resblock__diffusion_kernel:"): break
tail = """.section .rodata,"a"
.p2align 6
.amdhsa_kernel standalone__adm_resblock__diffusion_kernel
  .amdhsa_next_free_vgpr 256
  .amdhsa_next_free_sgpr 102
  .amdhsa_accum_offset 256
  .amdhsa_group_segment_fixed_size 0
  .amdhsa_kernarg_size 96
  .amdhsa_user_sgpr_count 2
  .amdhsa_user_sgpr_kernarg_segment_ptr 1
  .amdhsa_system_sgpr_workgroup_id_x 1
.end_amdhsa_kernel
"""
open(OUT, "w").write("\n".join(head) + "\n" + "\n".join(L) + "\n" + tail)
```
